```python
import torch

def _softmax(x, axis=-1):
    return torch.softmax(x, dim=axis)
def _gelu(x):
    return torch.nn.functional.gelu(x, approximate="tanh")
def _silu(x):
    return torch.nn.functional.silu(x)
def _sigmoid(x):
    return torch.sigmoid(x)
def _layernorm(x, axis=-1, eps=1e-5):
    m = x.mean(dim=axis, keepdim=True)
    v = x.var(dim=axis, keepdim=True, unbiased=False)
    return (x - m) / torch.sqrt(v + eps)
def _scatter_add(tgt, idx, src, axis=0):
    return tgt.clone().index_add_(axis, idx, src)
def _segment_sum(src, seg, n):
    out = torch.zeros((n,) + src.shape[1:], dtype=src.dtype)
    return out.index_add_(0, seg, src)
def _pad(x, pw):
    flat = tuple(v for pair in reversed(pw) for v in pair)
    return torch.nn.functional.pad(x, flat)

kernel_name = 'standalone__channel_attn_se__vision'

def setup_inputs():

    _w = (lambda a: (lambda t: t.to(torch.bfloat16) if t.is_floating_point() else t)(torch.as_tensor(a)))
    H = W = 512
    C = 96
    r = max(C // 16, 4)
    return {
        "x": _w((lambda *s: torch.randn(*s, dtype=torch.bfloat16) * 3.2)(1, H, W, C)),
        "w_down": _w((lambda *s: torch.randn(*s, dtype=torch.bfloat16) * 12.8)(C, r)),
        "w_up": _w((lambda *s: torch.randn(*s, dtype=torch.bfloat16) * 3.2)(r, C)),
    }

def reference(x, w_down, w_up):
    s = x.mean(axis=(1, 2))
    h = _silu(torch.einsum('bc,cr->br', s, w_down))
    g = _sigmoid(torch.einsum('br,rc->bc', h, w_up))
    return x * g[:, None, None, :]
```

```python
import sys

opts = dict(ld="nt", st="", sleep=8, timeout=1 << 14, ts=0, tsw=0, mode="full", xchg=1, need=256)
for a in sys.argv[2:]:
    k, v = a.split("=", 1)
    opts[k] = v if not v.lstrip("-").isdigit() else int(v)

NWG = 256
NT = 768
NLOAD = 16
CHUNK = NT * 16 * NLOAD
XBYTES = 50331648
WSBYTES = NWG * 384

LA = 0
LB = 24576
LC = 36864
LD = 49152
LH = 49536
LG = 49600
LF = 49984
LDS_BYTES = 50176

L = []
TS = [0]
def stamp():
    if opts["ts"]:
        i = TS[0]
        TS[0] += 1
        e(f"    s_memrealtime s[{60+2*i}:{61+2*i}]")
def e(s=""):
    L.append(s)

e(f"; @launch grid=({NWG},1,1) block=({NT},1,1) lds={LDS_BYTES}")
e('.amdgcn_target "amdgcn-amd-amdhsa--gfx950"')
e(".text")
e(".globl standalone__channel_attn_se__vision_kernel")
e(".p2align 8")
e(".type standalone__channel_attn_se__vision_kernel,@function")
e("standalone__channel_attn_se__vision_kernel:")
e(f"    s_cmp_ge_u32 s2, {NWG}")
e("    s_cbranch_scc1 L_end")
if opts["mode"] == "empty":
    e("    s_branch L_end")
stamp()
e("    s_load_dwordx4 s[4:7], s[0:1], 0")
e("    s_load_dwordx4 s[8:11], s[0:1], 16")
e("    s_load_dwordx4 s[12:15], s[0:1], 32")
for k in range(NLOAD):
    e(f"    s_mov_b32 s{40+k}, {k*NT*16*NWG}")
e("    v_lshlrev_b32 v2, 4, v0                    ; t*16")
e("    v_lshlrev_b32 v4, 5, v0                    ; t*32")
e(f"    s_mul_i32 s3, s2, {NT*16}")
e("    v_add_u32 v1, s3, v2")
e("    s_mov_b32 s56, 5462")
e("    v_mul_lo_u32 v3, v0, s56")
e("    v_lshrrev_b32 v3, 16, v3                   ; t/12")
e("    v_mul_u32_u24 v3, 12, v3")
e("    v_sub_u32 v3, v0, v3                       ; t%12")
e(f"    v_lshlrev_b32 v5, 5, v3                    ; (t%12)*32")
e(f"    v_add_u32 v5, {LG}, v5                     ; gate read address")
e("    s_mov_b32 s56, 2731")
e("    v_mul_lo_u32 v3, v0, s56")
e("    v_lshrrev_b32 v3, 16, v3                   ; t/24")
e("    v_mul_u32_u24 v3, 384, v3")
e("    v_add_u32 v6, v2, v3                       ; stage-1 read address = t*16 + (t/24)*384")
e("    v_and_b32 v3, 15, v0")
e("    v_mul_u32_u24 v7, 72, v3                   ; 72*(t&15)")
e("    v_lshrrev_b32 v3, 4, v0")
e("    v_lshl_add_u32 v7, v3, 1, v7")
e("    v_lshlrev_b32 v3, 1, v0")
e("    s_waitcnt lgkmcnt(0)")
def srd(d, lo, hi, n):
    e(f"    s_mov_b32 s{d}, s{lo}")
    e(f"    s_and_b32 s{d+1}, s{hi}, 0xffff")
    e(f"    s_mov_b32 s{d+2}, {n}")
    e(f"    s_mov_b32 s{d+3}, 0x00020000")
srd(16, 4, 5, XBYTES)
srd(20, 10, 11, XBYTES)
srd(24, 14, 15, WSBYTES)
srd(28, 12, 13, 256)
srd(32, 6, 7, 1152)
srd(36, 8, 9, 1152)
for k in range(6):
    e(f"    buffer_load_ushort v{40+k}, v7, s[32:35], 0 offen offset:{12*k}")
for r in range(6):
    e(f"    buffer_load_ushort v{46+r}, v3, s[36:39], 0 offen offset:{192*r}")
if opts["mode"] == "write":
    e("    s_branch L_scale")
for k in range(NLOAD):
    e(f"    buffer_load_dwordx4 v[{64+4*k}:{67+4*k}], v1, s[16:19], s{40+k} offen {opts['ld']}")
for j in range(8):
    e(f"    v_mov_b32 v{16+j}, 0")
e("    v_mov_b32 v8, 0xffff0000")
for k in range(NLOAD):
    e(f"    s_waitcnt vmcnt({NLOAD-1-k})")
    if k == 0:
        for j in range(12):
            e(f"    v_lshlrev_b32 v{40+j}, 16, v{40+j}")
    for j in range(4):
        d = 64 + 4 * k + j
        e(f"    v_lshlrev_b32 v24, 16, v{d}")
        e(f"    v_and_b32 v25, v8, v{d}")
        e(f"    v_add_f32 v{16+2*j}, v{16+2*j}, v24")
        e(f"    v_add_f32 v{17+2*j}, v{17+2*j}, v25")

if opts["mode"] == "read":
    e("    s_branch L_end")
stamp()
e("L_reduce:")
e(f"    ds_write_b128 v4, v[16:19] offset:{LA}")
e(f"    ds_write_b128 v4, v[20:23] offset:{LA+16}")
e("    s_waitcnt lgkmcnt(0)")
e("    s_barrier")
e(f"    ds_read_b128 v[24:27], v6 offset:{LA}")
e(f"    ds_read_b128 v[28:31], v6 offset:{LA+384}")
e("    s_waitcnt lgkmcnt(0)")
for j in range(4):
    e(f"    v_add_f32 v{24+j}, v{24+j}, v{28+j}")
e(f"    ds_write_b128 v2, v[24:27] offset:{LB}")
e("    s_waitcnt lgkmcnt(0)")
e("    s_barrier")
e("    v_cmp_gt_u32 vcc, 24, v0")
e("    s_and_saveexec_b64 s[58:59], vcc")
e("    s_cbranch_execz L_after_publish")
for j in range(4):
    e(f"    v_mov_b32 v{24+j}, 0")
for blk in range(4):
    for i in range(8):
        e(f"    ds_read_b128 v[{128+4*i}:{131+4*i}], v2 offset:{LB+(blk*8+i)*384}")
    for i in range(8):
        e(f"    s_waitcnt lgkmcnt({7-i})")
        for j in range(4):
            e(f"    v_add_f32 v{24+j}, v{24+j}, v{128+4*i+j}")
e("    s_mul_i32 s56, s2, 384")
e("    v_add_u32 v28, s56, v2")
e("    buffer_store_dwordx4 v[24:27], v28, s[24:27], 0 offen sc1")
e("    s_waitcnt vmcnt(0)")
stamp()
e("    v_mov_b32 v28, 0")
e("    v_mov_b32 v29, 1")
e("    s_mov_b64 exec, 1")
if opts["xchg"] == 0:
    e("    buffer_atomic_add v29, v28, s[28:31], 0 offen sc1")
    e(f"    s_mov_b32 s57, {opts['timeout']}")
    e("L_poll:")
    e("    buffer_load_dword v29, v28, s[28:31], 0 offen sc1")
    e("    s_waitcnt vmcnt(0)")
    e("    v_readfirstlane_b32 s56, v29")
    e(f"    s_cmp_ge_u32 s56, {NWG}")
    e("    s_cbranch_scc1 L_poll_done")
    e(f"    s_sleep {opts['sleep']}")
    e("    s_sub_u32 s57, s57, 1")
    e("    s_cmp_lg_u32 s57, 0")
    e("    s_cbranch_scc1 L_poll")
    e("L_poll_done:")
    stamp()
else:
    e("    buffer_atomic_add v29, v28, s[28:31], 0 offen sc0 sc1")
    e(f"    s_mov_b32 s57, {opts['timeout']}")
    e("    s_waitcnt vmcnt(0)")
    stamp()
    e("    v_readfirstlane_b32 s56, v29")
    e(f"    s_cmp_lg_u32 s56, {opts['need']-1}")
    e("    s_cbranch_scc1 L_wait")
    e("    v_mov_b32 v29, 1")
    e("    buffer_store_dword v29, v28, s[28:31], 0 offen offset:128 sc1")
    e("    s_branch L_poll_done")
    e("L_wait:")
    e("L_poll:")
    e("    buffer_load_dword v29, v28, s[28:31], 0 offen offset:128 sc1")
    e("    s_waitcnt vmcnt(0)")
    e("    v_readfirstlane_b32 s56, v29")
    e("    s_cmp_eq_u32 s56, 1")
    e("    s_cbranch_scc1 L_poll_done")
    e(f"    s_sleep {opts['sleep']}")
    e("    s_sub_u32 s57, s57, 1")
    e("    s_cmp_lg_u32 s57, 0")
    e("    s_cbranch_scc1 L_poll")
    e("L_poll_done:")
    stamp()
    e("    s_cmp_eq_u32 s57, 0")
    e("    s_cselect_b32 s56, 1, 0")
    e("    v_mov_b32 v29, s56")
    e(f"    ds_write_b32 v28, v29 offset:{LF}")
    e("    s_waitcnt lgkmcnt(0)")
e("L_after_publish:")
e("    s_mov_b64 exec, s[58:59]")
e("    s_barrier")
e("    v_mov_b32 v28, 0")
e(f"    ds_read_b32 v29, v28 offset:{LF}")
e("    s_waitcnt lgkmcnt(0)")
e("    v_readfirstlane_b32 s56, v29")
e("    s_cmp_lg_u32 s56, 0")
e("    s_cbranch_scc1 L_alone")
for i in range(8):
    e(f"    s_mov_b32 s56, {i*NT*16}")
    e(f"    buffer_load_dwordx4 v[{128+4*i}:{131+4*i}], v2, s[24:27], s56 offen sc1")
for i in range(8):
    e(f"    s_waitcnt vmcnt({7-i})")
    for j in range(4):
        if i == 0:
            e(f"    v_mov_b32 v{24+j}, v{128+j}")
        else:
            e(f"    v_add_f32 v{24+j}, v{24+j}, v{128+4*i+j}")
e(f"    ds_write_b128 v2, v[24:27] offset:{LC}")
e("    s_waitcnt lgkmcnt(0)")
e("    s_barrier")
stamp()
e("    v_cmp_gt_u32 vcc, 96, v0")
e("    s_and_saveexec_b64 s[58:59], vcc")
e("    s_cbranch_execz L_skip_mean")
e("    v_lshlrev_b32 v28, 2, v0")
e("    v_mov_b32 v24, 0")
for j in range(32):
    e(f"    ds_read_b32 v{52+(j%8)}, v28 offset:{LC+j*384}")
    if j % 8 == 7:
        e("    s_waitcnt lgkmcnt(0)")
        for i in range(8):
            e(f"    v_add_f32 v24, v24, v{52+i}")
e("L_mean_tail:")
e("    v_mul_f32 v24, 0x36800000, v24             ; * 2^-18")
e("    v_cvt_pk_bf16_f32 v24, v24, v24")
e("    v_lshlrev_b32 v24, 16, v24")
e(f"    ds_write_b32 v28, v24 offset:{LD}")
e("    s_waitcnt lgkmcnt(0)")
e("L_skip_mean:")
e("    s_mov_b64 exec, s[58:59]")
e("    s_barrier")
e("    v_cmp_gt_u32 vcc, 96, v0")
e("    s_and_saveexec_b64 s[58:59], vcc")
e("    s_cbranch_execz L_skip_down")
e("    v_and_b32 v28, 15, v0")
e("    v_mul_u32_u24 v28, 24, v28")
e(f"    ds_read_b64 v[52:53], v28 offset:{LD}")
e(f"    ds_read_b64 v[54:55], v28 offset:{LD+8}")
e(f"    ds_read_b64 v[56:57], v28 offset:{LD+16}")
e("    s_waitcnt lgkmcnt(0)")
e("    v_mul_f32 v24, v52, v40")
for k in range(1, 6):
    e(f"    v_fmac_f32 v24, v{52+k}, v{40+k}")
for sh in (1, 2, 4, 8):
    e("    s_nop 1")
    e(f"    v_add_f32_dpp v24, v24, v24 row_shr:{sh} row_mask:0xf bank_mask:0xf")
e("    v_cvt_pk_bf16_f32 v24, v24, v24")
e("    v_lshlrev_b32 v24, 16, v24")
e("    v_mul_f32 v25, 0xbfb8aa3b, v24             ; -d*log2(e)")
e("    v_exp_f32 v25, v25")
e("    s_nop 0")
e("    v_add_f32 v25, 1.0, v25")
e("    v_rcp_f32 v25, v25")
e("    s_nop 0")
e("    v_mul_f32 v24, v24, v25                    ; silu(d)")
e("    v_cvt_pk_bf16_f32 v24, v24, v24")
e("    v_lshlrev_b32 v24, 16, v24")
e("    v_and_b32 v28, 15, v0")
e("    v_cmp_eq_u32 vcc, 15, v28")
e("    s_and_b64 exec, exec, vcc")
e("    v_lshrrev_b32 v28, 4, v0")
e("    v_lshlrev_b32 v28, 2, v28")
e(f"    ds_write_b32 v28, v24 offset:{LH}")
e("    s_waitcnt lgkmcnt(0)")
e("L_skip_down:")
e("    s_mov_b64 exec, s[58:59]")
e("    s_barrier")
e("    v_cmp_gt_u32 vcc, 96, v0")
e("    s_and_saveexec_b64 s[58:59], vcc")
e("    s_cbranch_execz L_skip_up")
e("    v_mov_b32 v28, 0")
e(f"    ds_read_b128 v[52:55], v28 offset:{LH}")
e(f"    ds_read_b64 v[56:57], v28 offset:{LH+16}")
e("    s_waitcnt lgkmcnt(0)")
e("    v_mul_f32 v24, v52, v46")
for r in range(1, 6):
    e(f"    v_fmac_f32 v24, v{52+r}, v{46+r}")
e("    v_cvt_pk_bf16_f32 v24, v24, v24")
e("    v_lshlrev_b32 v24, 16, v24")
e("    v_mul_f32 v25, 0xbfb8aa3b, v24")
e("    v_exp_f32 v25, v25")
e("    s_nop 0")
e("    v_add_f32 v25, 1.0, v25")
e("    v_rcp_f32 v25, v25")
e("    s_nop 0")
e("    v_cvt_pk_bf16_f32 v25, v25, v25")
e("    v_lshlrev_b32 v25, 16, v25")
e("    v_lshlrev_b32 v28, 2, v0")
e(f"    ds_write_b32 v28, v25 offset:{LG}")
e("    s_waitcnt lgkmcnt(0)")
e("L_skip_up:")
e("    s_mov_b64 exec, s[58:59]")
e("    s_barrier")
e("    ds_read_b128 v[16:19], v5")
e("    ds_read_b128 v[20:23], v5 offset:16")
e("    v_mov_b32 v8, 0xffff0000")
e("    s_waitcnt lgkmcnt(0)")
e("L_scale:")
stamp()
for k in range(NLOAD):
    for j in range(4):
        d = 64 + 4 * k + j
        e(f"    v_lshlrev_b32 v24, 16, v{d}")
        e(f"    v_and_b32 v25, v8, v{d}")
        e(f"    v_mul_f32 v24, v24, v{16+2*j}")
        e(f"    v_mul_f32 v25, v25, v{17+2*j}")
        e(f"    v_cvt_pk_bf16_f32 v{d}, v24, v25")
    e(f"    buffer_store_dwordx4 v[{64+4*k}:{67+4*k}], v1, s[20:23], s{40+k} offen {opts['st']}")
if opts["ts"]:
    e("    s_waitcnt vmcnt(0)")
    stamp()
    if opts["ts"] == 1:
        e(f"    s_cmp_lg_u32 s2, {opts['tsw']}")
        e("    s_cbranch_scc1 L_end")
    e("    v_cmp_gt_u32 vcc, 1, v0")
    e("    s_and_saveexec_b64 s[58:59], vcc")
    e("    s_cbranch_execz L_end")
    e("    s_waitcnt lgkmcnt(0)")
    if opts["ts"] == 1:
        e("    v_mov_b32 v28, 0")
    else:
        e("    s_lshl_b32 s56, s2, 6")
        e("    s_add_u32 s56, s56, 98304")
        e("    v_mov_b32 v28, s56")
        e(f"    s_mov_b32 s26, {98304 + 64*NWG}")
    for i in range(TS[0]):
        e(f"    v_mov_b32 v29, s{60+2*i}")
        if opts["ts"] == 1:
            e(f"    buffer_store_dword v29, v28, s[28:31], 0 offen offset:{16+4*i}")
        else:
            e(f"    buffer_store_dword v29, v28, s[24:27], 0 offen offset:{4*i}")
e("    s_branch L_end")
e("L_alone:")
e("    s_barrier                                  ; every wave has read the mode word")
for j in range(8):
    e(f"    v_mov_b32 v{16+j}, 0")
e("    v_mov_b32 v8, 0xffff0000")
e("    s_mov_b32 s56, 0")
e("L_alone_loop:")
for i in range(8):
    e(f"    s_add_u32 s57, s56, {i*NT*16}")
    e(f"    buffer_load_dwordx4 v[{128+4*i}:{131+4*i}], v2, s[16:19], s57 offen")
for i in range(8):
    e(f"    s_waitcnt vmcnt({7-i})")
    for j in range(4):
        d = 128 + 4 * i + j
        e(f"    v_lshlrev_b32 v24, 16, v{d}")
        e(f"    v_and_b32 v25, v8, v{d}")
        e(f"    v_add_f32 v{16+2*j}, v{16+2*j}, v24")
        e(f"    v_add_f32 v{17+2*j}, v{17+2*j}, v25")
e(f"    s_add_u32 s56, s56, {8*NT*16}")
e(f"    s_cmp_lt_u32 s56, {XBYTES}")
e("    s_cbranch_scc1 L_alone_loop")
e(f"    ds_write_b128 v4, v[16:19] offset:{LA}")
e(f"    ds_write_b128 v4, v[20:23] offset:{LA+16}")
e("    s_waitcnt lgkmcnt(0)")
e("    s_barrier")
e("    v_cmp_gt_u32 vcc, 96, v0")
e("    s_and_saveexec_b64 s[58:59], vcc")
e("    s_cbranch_execz L_skip_mean")
e("    v_lshlrev_b32 v28, 2, v0")
e("    v_mov_b32 v24, 0")
for j in range(64):
    e(f"    ds_read_b32 v{52+(j%8)}, v28 offset:{LA+j*384}")
    if j % 8 == 7:
        e("    s_waitcnt lgkmcnt(0)")
        for i in range(8):
            e(f"    v_add_f32 v24, v24, v{52+i}")
e("    s_branch L_mean_tail")
e("L_end:")
e("    s_endpgm")
e('.section .rodata,"a"')
e(".p2align 6")
e(".amdhsa_kernel standalone__channel_attn_se__vision_kernel")
e("  .amdhsa_next_free_vgpr 160")
e("  .amdhsa_next_free_sgpr 80")
e("  .amdhsa_accum_offset 160")
e("  .amdhsa_group_segment_fixed_size 0")
e("  .amdhsa_kernarg_size 48")
e("  .amdhsa_user_sgpr_count 2")
e("  .amdhsa_user_sgpr_kernarg_segment_ptr 1")
e("  .amdhsa_system_sgpr_workgroup_id_x 1")
e(".end_amdhsa_kernel")

open(sys.argv[1], "w").write("\n".join(L) + "\n")
```

```python
import sys

opts = dict(ld="nt", st="", sleep=8, timeout=1 << 14, ts=0, tsw=0, mode="full", xchg=1, need=256, nrep=8)
for a in sys.argv[2:]:
    k, v = a.split("=", 1)
    opts[k] = v if not v.lstrip("-").isdigit() else int(v)

NWG = 256
NT = 768
NLOAD = 16
CHUNK = NT * 16 * NLOAD
XBYTES = 50331648
WSBYTES = NWG * 384

LA = 0
LB = 24576
LC = 36864
LD = 49152
LH = 49536
LG = 49600
LF = 49984
LDS_BYTES = 50176

L = []
TS = [0]
def stamp():
    if opts["ts"]:
        i = TS[0]
        TS[0] += 1
        e(f"    s_memrealtime s[{62+2*i}:{63+2*i}]")
def e(s=""):
    L.append(s)

e(f"; @launch grid=({NWG},1,1) block=({NT},1,1) lds={LDS_BYTES}")
e('.amdgcn_target "amdgcn-amd-amdhsa--gfx950"')
e(".text")
e(".globl standalone__channel_attn_se__vision_kernel")
e(".p2align 8")
e(".type standalone__channel_attn_se__vision_kernel,@function")
e("standalone__channel_attn_se__vision_kernel:")
e(f"    s_cmp_ge_u32 s2, {NWG}")
e("    s_cbranch_scc1 L_end")
if opts["mode"] == "empty":
    e("    s_branch L_end")
stamp()
e("    s_load_dwordx4 s[4:7], s[0:1], 0")
e("    s_load_dwordx4 s[8:11], s[0:1], 16")
e("    s_load_dwordx4 s[12:15], s[0:1], 32")
for k in range(NLOAD):
    e(f"    s_mov_b32 s{40+k}, {k*NT*16*NWG}")
e("    v_lshlrev_b32 v2, 4, v0                    ; t*16")
e("    v_lshlrev_b32 v4, 5, v0                    ; t*32")
e(f"    s_mul_i32 s3, s2, {NT*16}")
e("    v_add_u32 v1, s3, v2")
e("    s_mov_b32 s56, 5462")
e("    v_mul_lo_u32 v3, v0, s56")
e("    v_lshrrev_b32 v3, 16, v3                   ; t/12")
e("    v_mul_u32_u24 v3, 12, v3")
e("    v_sub_u32 v3, v0, v3                       ; t%12")
e(f"    v_lshlrev_b32 v5, 5, v3                    ; (t%12)*32")
e(f"    v_add_u32 v5, {LG}, v5                     ; gate read address")
e("    s_mov_b32 s56, 2731")
e("    v_mul_lo_u32 v3, v0, s56")
e("    v_lshrrev_b32 v3, 16, v3                   ; t/24")
e("    v_mul_u32_u24 v3, 384, v3")
e("    v_add_u32 v6, v2, v3                       ; stage-1 read address = t*16 + (t/24)*384")
e("    v_and_b32 v3, 15, v0")
e("    v_mul_u32_u24 v7, 72, v3                   ; 72*(t&15)")
e("    v_lshrrev_b32 v3, 4, v0")
e("    v_lshl_add_u32 v7, v3, 1, v7")
e("    v_lshlrev_b32 v3, 1, v0")
e("    s_waitcnt lgkmcnt(0)")
def srd(d, lo, hi, n):
    e(f"    s_mov_b32 s{d}, s{lo}")
    e(f"    s_and_b32 s{d+1}, s{hi}, 0xffff")
    e(f"    s_mov_b32 s{d+2}, {n}")
    e(f"    s_mov_b32 s{d+3}, 0x00020000")
srd(16, 4, 5, XBYTES)
srd(20, 10, 11, XBYTES)
srd(24, 14, 15, WSBYTES)
srd(28, 12, 13, 256)
srd(32, 6, 7, 1152)
srd(36, 8, 9, 1152)
if opts["xchg"] == 2:
    e(f"    s_and_b32 s56, s2, {opts['nrep']-1}")
    e("    s_lshl_b32 s56, s56, 7")
    e(f"    s_add_u32 s56, s56, {WSBYTES}")
    e("    v_mov_b32 v9, s56")
    e(f"    s_mov_b32 s26, {WSBYTES + 128*opts['nrep']}")
    e("    buffer_load_dword v10, v9, s[24:27], 0 offen sc1")
for k in range(6):
    e(f"    buffer_load_ushort v{40+k}, v7, s[32:35], 0 offen offset:{12*k}")
for r in range(6):
    e(f"    buffer_load_ushort v{46+r}, v3, s[36:39], 0 offen offset:{192*r}")
if opts["mode"] == "write":
    e("    s_branch L_scale")
for k in range(NLOAD):
    e(f"    buffer_load_dwordx4 v[{64+4*k}:{67+4*k}], v1, s[16:19], s{40+k} offen {opts['ld']}")
for j in range(8):
    e(f"    v_mov_b32 v{16+j}, 0")
e("    v_mov_b32 v8, 0xffff0000")
for k in range(NLOAD):
    e(f"    s_waitcnt vmcnt({NLOAD-1-k})")
    if k == 0:
        for j in range(12):
            e(f"    v_lshlrev_b32 v{40+j}, 16, v{40+j}")
    for j in range(4):
        d = 64 + 4 * k + j
        e(f"    v_lshlrev_b32 v24, 16, v{d}")
        e(f"    v_and_b32 v25, v8, v{d}")
        e(f"    v_add_f32 v{16+2*j}, v{16+2*j}, v24")
        e(f"    v_add_f32 v{17+2*j}, v{17+2*j}, v25")

if opts["mode"] == "read":
    e("    s_branch L_end")
stamp()
e("L_reduce:")
e(f"    ds_write_b128 v4, v[16:19] offset:{LA}")
e(f"    ds_write_b128 v4, v[20:23] offset:{LA+16}")
e("    s_waitcnt lgkmcnt(0)")
e("    s_barrier")
e(f"    ds_read_b128 v[24:27], v6 offset:{LA}")
e(f"    ds_read_b128 v[28:31], v6 offset:{LA+384}")
e("    s_waitcnt lgkmcnt(0)")
for j in range(4):
    e(f"    v_add_f32 v{24+j}, v{24+j}, v{28+j}")
e(f"    ds_write_b128 v2, v[24:27] offset:{LB}")
e("    s_waitcnt lgkmcnt(0)")
e("    s_barrier")
e("    v_cmp_gt_u32 vcc, 24, v0")
e("    s_and_saveexec_b64 s[58:59], vcc")
e("    s_cbranch_execz L_after_publish")
for j in range(4):
    e(f"    v_mov_b32 v{24+j}, 0")
for blk in range(4):
    for i in range(8):
        e(f"    ds_read_b128 v[{128+4*i}:{131+4*i}], v2 offset:{LB+(blk*8+i)*384}")
    for i in range(8):
        e(f"    s_waitcnt lgkmcnt({7-i})")
        for j in range(4):
            e(f"    v_add_f32 v{24+j}, v{24+j}, v{128+4*i+j}")
e("    s_mul_i32 s56, s2, 384")
e("    v_add_u32 v28, s56, v2")
e("    buffer_store_dwordx4 v[24:27], v28, s[24:27], 0 offen sc1")
e("    s_waitcnt vmcnt(0)")
stamp()
e("    v_mov_b32 v28, 0")
e("    v_mov_b32 v29, 1")
e("    s_mov_b64 exec, 1")
if opts["xchg"] == 0:
    e("    buffer_atomic_add v29, v28, s[28:31], 0 offen sc1")
    e(f"    s_mov_b32 s57, {opts['timeout']}")
    e("L_poll:")
    e("    buffer_load_dword v29, v28, s[28:31], 0 offen sc1")
    e("    s_waitcnt vmcnt(0)")
    e("    v_readfirstlane_b32 s56, v29")
    e(f"    s_cmp_ge_u32 s56, {NWG}")
    e("    s_cbranch_scc1 L_poll_done")
    e(f"    s_sleep {opts['sleep']}")
    e("    s_sub_u32 s57, s57, 1")
    e("    s_cmp_lg_u32 s57, 0")
    e("    s_cbranch_scc1 L_poll")
    e("L_poll_done:")
    stamp()
elif opts["xchg"] == 2:
    e("    s_and_b32 s56, s2, 3")
    e("    s_lshl_b32 s56, s56, 6")
    e("    v_mov_b32 v28, s56")
    e("    buffer_atomic_add v29, v28, s[28:31], 0 offen sc0 sc1")
    e(f"    s_mov_b32 s57, {opts['timeout']}")
    e("    s_waitcnt vmcnt(0)")
    stamp()
    e("    v_readfirstlane_b32 s56, v29")
    e(f"    s_cmp_lg_u32 s56, {opts['need']//4-1}")
    e("    s_cbranch_scc1 L_wait")
    e("    v_mov_b32 v28, 4")
    e("    v_mov_b32 v29, 1")
    e("    buffer_atomic_add v29, v28, s[28:31], 0 offen sc0 sc1")
    e("    s_waitcnt vmcnt(0)")
    e("    v_readfirstlane_b32 s56, v29")
    e("    s_cmp_lg_u32 s56, 3")
    e("    s_cbranch_scc1 L_wait")
    e(f"    s_mov_b64 exec, {(1 << opts['nrep']) - 1}")
    e(f"    v_lshlrev_b32 v28, 7, v0")
    e(f"    v_add_u32 v28, {WSBYTES}, v28")
    e("    v_readfirstlane_b32 s56, v10")
    e("    s_add_u32 s56, s56, 1")
    e("    v_mov_b32 v29, s56")
    e("    buffer_store_dword v29, v28, s[24:27], 0 offen sc1")
    e("    s_mov_b64 exec, 1")
    e("    s_branch L_poll_done")
    e("L_wait:")
    e("    v_readfirstlane_b32 s60, v10")
    e("L_poll:")
    e("    buffer_load_dword v29, v9, s[24:27], 0 offen sc1")
    e("    s_waitcnt vmcnt(0)")
    e("    v_readfirstlane_b32 s56, v29")
    e("    s_cmp_lg_u32 s56, s60")
    e("    s_cbranch_scc1 L_poll_done")
    e(f"    s_sleep {opts['sleep']}")
    e("    s_sub_u32 s57, s57, 1")
    e("    s_cmp_lg_u32 s57, 0")
    e("    s_cbranch_scc1 L_poll")
    e("L_poll_done:")
    stamp()
    e("    v_mov_b32 v28, 0")
    e("    s_cmp_eq_u32 s57, 0")
    e("    s_cselect_b32 s56, 1, 0")
    e("    v_mov_b32 v29, s56")
    e(f"    ds_write_b32 v28, v29 offset:{LF}")
    e("    s_waitcnt lgkmcnt(0)")
else:
    e("    buffer_atomic_add v29, v28, s[28:31], 0 offen sc0 sc1")
    e(f"    s_mov_b32 s57, {opts['timeout']}")
    e("    s_waitcnt vmcnt(0)")
    stamp()
    e("    v_readfirstlane_b32 s56, v29")
    e(f"    s_cmp_lg_u32 s56, {opts['need']-1}")
    e("    s_cbranch_scc1 L_wait")
    e("    v_mov_b32 v29, 1")
    e("    buffer_store_dword v29, v28, s[28:31], 0 offen offset:128 sc1")
    e("    s_branch L_poll_done")
    e("L_wait:")
    e("L_poll:")
    e("    buffer_load_dword v29, v28, s[28:31], 0 offen offset:128 sc1")
    e("    s_waitcnt vmcnt(0)")
    e("    v_readfirstlane_b32 s56, v29")
    e("    s_cmp_eq_u32 s56, 1")
    e("    s_cbranch_scc1 L_poll_done")
    e(f"    s_sleep {opts['sleep']}")
    e("    s_sub_u32 s57, s57, 1")
    e("    s_cmp_lg_u32 s57, 0")
    e("    s_cbranch_scc1 L_poll")
    e("L_poll_done:")
    stamp()
    e("    s_cmp_eq_u32 s57, 0")
    e("    s_cselect_b32 s56, 1, 0")
    e("    v_mov_b32 v29, s56")
    e(f"    ds_write_b32 v28, v29 offset:{LF}")
    e("    s_waitcnt lgkmcnt(0)")
e("L_after_publish:")
e("    s_mov_b64 exec, s[58:59]")
e("    s_barrier")
e("    v_mov_b32 v28, 0")
e(f"    ds_read_b32 v29, v28 offset:{LF}")
e("    s_waitcnt lgkmcnt(0)")
e("    v_readfirstlane_b32 s56, v29")
e("    s_cmp_lg_u32 s56, 0")
e("    s_cbranch_scc1 L_alone")
for i in range(8):
    e(f"    s_mov_b32 s56, {i*NT*16}")
    e(f"    buffer_load_dwordx4 v[{128+4*i}:{131+4*i}], v2, s[24:27], s56 offen sc1")
for i in range(8):
    e(f"    s_waitcnt vmcnt({7-i})")
    for j in range(4):
        if i == 0:
            e(f"    v_mov_b32 v{24+j}, v{128+j}")
        else:
            e(f"    v_add_f32 v{24+j}, v{24+j}, v{128+4*i+j}")
e(f"    ds_write_b128 v2, v[24:27] offset:{LC}")
e("    s_waitcnt lgkmcnt(0)")
e("    s_barrier")
stamp()
e("    v_cmp_gt_u32 vcc, 96, v0")
e("    s_and_saveexec_b64 s[58:59], vcc")
e("    s_cbranch_execz L_skip_mean")
e("    v_lshlrev_b32 v28, 2, v0")
e("    v_mov_b32 v24, 0")
for j in range(32):
    e(f"    ds_read_b32 v{52+(j%8)}, v28 offset:{LC+j*384}")
    if j % 8 == 7:
        e("    s_waitcnt lgkmcnt(0)")
        for i in range(8):
            e(f"    v_add_f32 v24, v24, v{52+i}")
e("L_mean_tail:")
e("    v_mul_f32 v24, 0x36800000, v24             ; * 2^-18")
e("    v_cvt_pk_bf16_f32 v24, v24, v24")
e("    v_lshlrev_b32 v24, 16, v24")
e(f"    ds_write_b32 v28, v24 offset:{LD}")
e("    s_waitcnt lgkmcnt(0)")
e("L_skip_mean:")
e("    s_mov_b64 exec, s[58:59]")
e("    s_barrier")
e("    v_cmp_gt_u32 vcc, 96, v0")
e("    s_and_saveexec_b64 s[58:59], vcc")
e("    s_cbranch_execz L_skip_down")
e("    v_and_b32 v28, 15, v0")
e("    v_mul_u32_u24 v28, 24, v28")
e(f"    ds_read_b64 v[52:53], v28 offset:{LD}")
e(f"    ds_read_b64 v[54:55], v28 offset:{LD+8}")
e(f"    ds_read_b64 v[56:57], v28 offset:{LD+16}")
e("    s_waitcnt lgkmcnt(0)")
e("    v_mul_f32 v24, v52, v40")
for k in range(1, 6):
    e(f"    v_fmac_f32 v24, v{52+k}, v{40+k}")
for sh in (1, 2, 4, 8):
    e("    s_nop 1")
    e(f"    v_add_f32_dpp v24, v24, v24 row_shr:{sh} row_mask:0xf bank_mask:0xf")
e("    v_cvt_pk_bf16_f32 v24, v24, v24")
e("    v_lshlrev_b32 v24, 16, v24")
e("    v_mul_f32 v25, 0xbfb8aa3b, v24             ; -d*log2(e)")
e("    v_exp_f32 v25, v25")
e("    s_nop 0")
e("    v_add_f32 v25, 1.0, v25")
e("    v_rcp_f32 v25, v25")
e("    s_nop 0")
e("    v_mul_f32 v24, v24, v25                    ; silu(d)")
e("    v_cvt_pk_bf16_f32 v24, v24, v24")
e("    v_lshlrev_b32 v24, 16, v24")
e("    v_and_b32 v28, 15, v0")
e("    v_cmp_eq_u32 vcc, 15, v28")
e("    s_and_b64 exec, exec, vcc")
e("    v_lshrrev_b32 v28, 4, v0")
e("    v_lshlrev_b32 v28, 2, v28")
e(f"    ds_write_b32 v28, v24 offset:{LH}")
e("    s_waitcnt lgkmcnt(0)")
e("L_skip_down:")
e("    s_mov_b64 exec, s[58:59]")
e("    s_barrier")
e("    v_cmp_gt_u32 vcc, 96, v0")
e("    s_and_saveexec_b64 s[58:59], vcc")
e("    s_cbranch_execz L_skip_up")
e("    v_mov_b32 v28, 0")
e(f"    ds_read_b128 v[52:55], v28 offset:{LH}")
e(f"    ds_read_b64 v[56:57], v28 offset:{LH+16}")
e("    s_waitcnt lgkmcnt(0)")
e("    v_mul_f32 v24, v52, v46")
for r in range(1, 6):
    e(f"    v_fmac_f32 v24, v{52+r}, v{46+r}")
e("    v_cvt_pk_bf16_f32 v24, v24, v24")
e("    v_lshlrev_b32 v24, 16, v24")
e("    v_mul_f32 v25, 0xbfb8aa3b, v24")
e("    v_exp_f32 v25, v25")
e("    s_nop 0")
e("    v_add_f32 v25, 1.0, v25")
e("    v_rcp_f32 v25, v25")
e("    s_nop 0")
e("    v_cvt_pk_bf16_f32 v25, v25, v25")
e("    v_lshlrev_b32 v25, 16, v25")
e("    v_lshlrev_b32 v28, 2, v0")
e(f"    ds_write_b32 v28, v25 offset:{LG}")
e("    s_waitcnt lgkmcnt(0)")
e("L_skip_up:")
e("    s_mov_b64 exec, s[58:59]")
e("    s_barrier")
e("    ds_read_b128 v[16:19], v5")
e("    ds_read_b128 v[20:23], v5 offset:16")
e("    v_mov_b32 v8, 0xffff0000")
e("    s_waitcnt lgkmcnt(0)")
e("L_scale:")
stamp()
for k in range(NLOAD):
    for j in range(4):
        d = 64 + 4 * k + j
        e(f"    v_lshlrev_b32 v24, 16, v{d}")
        e(f"    v_and_b32 v25, v8, v{d}")
        e(f"    v_mul_f32 v24, v24, v{16+2*j}")
        e(f"    v_mul_f32 v25, v25, v{17+2*j}")
        e(f"    v_cvt_pk_bf16_f32 v{d}, v24, v25")
    e(f"    buffer_store_dwordx4 v[{64+4*k}:{67+4*k}], v1, s[20:23], s{40+k} offen {opts['st']}")
if opts["ts"]:
    e("    s_waitcnt vmcnt(0)")
    stamp()
    if opts["ts"] == 1:
        e(f"    s_cmp_lg_u32 s2, {opts['tsw']}")
        e("    s_cbranch_scc1 L_end")
    e("    v_cmp_gt_u32 vcc, 1, v0")
    e("    s_and_saveexec_b64 s[58:59], vcc")
    e("    s_cbranch_execz L_end")
    e("    s_waitcnt lgkmcnt(0)")
    if opts["ts"] == 1:
        e("    v_mov_b32 v28, 0")
    else:
        e("    s_lshl_b32 s56, s2, 6")
        e("    s_add_u32 s56, s56, 98304")
        e("    v_mov_b32 v28, s56")
        e(f"    s_mov_b32 s26, {98304 + 64*NWG}")
    for i in range(TS[0]):
        e(f"    v_mov_b32 v29, s{62+2*i}")
        if opts["ts"] == 1:
            e(f"    buffer_store_dword v29, v28, s[28:31], 0 offen offset:{16+4*i}")
        else:
            e(f"    buffer_store_dword v29, v28, s[24:27], 0 offen offset:{4*i}")
e("    s_branch L_end")
e("L_alone:")
e("    s_barrier                                  ; every wave has read the mode word")
for j in range(8):
    e(f"    v_mov_b32 v{16+j}, 0")
e("    v_mov_b32 v8, 0xffff0000")
e("    s_mov_b32 s56, 0")
e("L_alone_loop:")
for i in range(8):
    e(f"    s_add_u32 s57, s56, {i*NT*16}")
    e(f"    buffer_load_dwordx4 v[{128+4*i}:{131+4*i}], v2, s[16:19], s57 offen")
for i in range(8):
    e(f"    s_waitcnt vmcnt({7-i})")
    for j in range(4):
        d = 128 + 4 * i + j
        e(f"    v_lshlrev_b32 v24, 16, v{d}")
        e(f"    v_and_b32 v25, v8, v{d}")
        e(f"    v_add_f32 v{16+2*j}, v{16+2*j}, v24")
        e(f"    v_add_f32 v{17+2*j}, v{17+2*j}, v25")
e(f"    s_add_u32 s56, s56, {8*NT*16}")
e(f"    s_cmp_lt_u32 s56, {XBYTES}")
e("    s_cbranch_scc1 L_alone_loop")
e(f"    ds_write_b128 v4, v[16:19] offset:{LA}")
e(f"    ds_write_b128 v4, v[20:23] offset:{LA+16}")
e("    s_waitcnt lgkmcnt(0)")
e("    s_barrier")
e("    v_cmp_gt_u32 vcc, 96, v0")
e("    s_and_saveexec_b64 s[58:59], vcc")
e("    s_cbranch_execz L_skip_mean")
e("    v_lshlrev_b32 v28, 2, v0")
e("    v_mov_b32 v24, 0")
for j in range(64):
    e(f"    ds_read_b32 v{52+(j%8)}, v28 offset:{LA+j*384}")
    if j % 8 == 7:
        e("    s_waitcnt lgkmcnt(0)")
        for i in range(8):
            e(f"    v_add_f32 v24, v24, v{52+i}")
e("    s_branch L_mean_tail")
e("L_end:")
e("    s_endpgm")
e('.section .rodata,"a"')
e(".p2align 6")
e(".amdhsa_kernel standalone__channel_attn_se__vision_kernel")
e("  .amdhsa_next_free_vgpr 160")
e("  .amdhsa_next_free_sgpr 82")
e("  .amdhsa_accum_offset 160")
e("  .amdhsa_group_segment_fixed_size 0")
e("  .amdhsa_kernarg_size 48")
e("  .amdhsa_user_sgpr_count 2")
e("  .amdhsa_user_sgpr_kernarg_segment_ptr 1")
e("  .amdhsa_system_sgpr_workgroup_id_x 1")
e(".end_amdhsa_kernel")

open(sys.argv[1], "w").write("\n".join(L) + "\n")
```
